```python
import torch

def _softmax(x, axis=-1):
    return torch.softmax(x, dim=axis)
def _gelu(x):
    return torch.nn.functional.gelu(x, approximate="tanh")
def _silu(x):
    return torch.nn.functional.silu(x)
def _sigmoid(x):
    return torch.sigmoid(x)
def _layernorm(x, axis=-1, eps=1e-5):
    m = x.mean(dim=axis, keepdim=True)
    v = x.var(dim=axis, keepdim=True, unbiased=False)
    return (x - m) / torch.sqrt(v + eps)
def _scatter_add(tgt, idx, src, axis=0):
    return tgt.clone().index_add_(axis, idx, src)
def _segment_sum(src, seg, n):
    out = torch.zeros((n,) + src.shape[1:], dtype=src.dtype)
    return out.index_add_(0, seg, src)
def _pad(x, pw):
    flat = tuple(v for pair in reversed(pw) for v in pair)
    return torch.nn.functional.pad(x, flat)

kernel_name = 'standalone__mha_softmax__sampling'

def setup_inputs():

    _w = (lambda a: (lambda t: t.to(torch.bfloat16) if t.is_floating_point() else t)(torch.as_tensor(a)))
    B, H, Sq, Sk, D = 8, 32, 1, 8192, 128
    return {
        "q": _w((lambda *s: torch.randn(*s, dtype=torch.bfloat16) * 0.8)(B, H, Sq, D)),
        "k": _w((lambda *s: torch.randn(*s, dtype=torch.bfloat16) * 0.8)(B, H, Sk, D)),
        "v": _w((lambda *s: torch.randn(*s, dtype=torch.bfloat16) * 0.05)(B, H, Sk, D)),
    }

def reference(q, k, v):
    scale = q.shape[-1] ** -0.5
    scores = torch.einsum("bhqd,bhkd->bhqk", q, k) * scale
    p = _softmax(scores, axis=-1)
    return torch.einsum("bhqk,bhkd->bhqd", p, v)
```

```python
import math, struct, sys

HEADER = """; Kernarg layout for this problem (48 bytes, ptrs only, base s[0:1]):
"""

def f32bits(x):
    return struct.unpack('<I', struct.pack('<f', x))[0]

def gen(NW=16, NG=2, mode='inter', pol='', compute=True, name='standalone__mha_softmax__sampling_kernel',
        kpol=None, vpol=None, ldsmin=0, stamps=False):
    if kpol is None: kpol = pol
    if vpol is None: vpol = pol
    NGRP = 512 // NW
    assert NGRP % NG == 0 and NGRP // NG >= 2
    L = []
    A = L.append
    c = (128 ** -0.5) * math.log2(math.e)
    lds = max(NW * 1024 + NW * 8, ldsmin)
    A(HEADER.rstrip())
    A(f"; @launch grid=(256,1,1) block=({NW*64},1,1) lds={lds}")
    A('.amdgcn_target "amdgcn-amd-amdhsa--gfx950"')
    A('.text')
    A(f'.globl {name}')
    A('.p2align 8')
    A(f'.type {name},@function')
    A(f'{name}:')
    VOFF, Q, MSK, M, MC, LS = 1, 2, 6, 10, 11, 12
    ACL, ACH = 16, 20
    S0, Y, Z, S, P, PP = 24, 28, 29, 30, 31, 32
    T, U = 33, 34
    PA, PB = 36, 40
    BUF = 48
    def kreg(b, n): return BUF + b * 32 + n * 4
    def vreg(b, n): return BUF + b * 32 + 16 + n * 4
    nvgpr = max(BUF + NG * 32, BUF + 2 * NW + 8 * min(NW, 4))
    gstride = (NW if mode == 'inter' else 1) * 4096

    A('  s_cmp_ge_u32 s2, 256')
    A('  s_cbranch_scc1 L_end')
    A('  s_load_dwordx8 s[4:11], s[0:1], 0')
    if stamps:
        A('  s_memrealtime s[44:45]')
        A('  s_load_dwordx2 s[14:15], s[0:1], 40')
    A('  v_readfirstlane_b32 s36, v0')
    A('  v_and_b32 v0, 63, v0')
    A('  s_lshr_b32 s36, s36, 6')
    A('  s_lshl_b32 s37, s2, 21')
    A('  s_lshr_b32 s38, s2, 11')
    if mode == 'inter':
        A('  s_lshl_b32 s39, s36, 12')
        A(f'  v_lshlrev_b32 v{VOFF}, 4, v0')
        A(f'  v_add_u32 v{VOFF}, s39, v{VOFF}')
        nrec = 1 << 21
    else:
        A(f'  s_mul_i32 s39, s36, {NGRP*4096}')
        A('  s_add_u32 s37, s37, s39')
        A(f'  v_lshlrev_b32 v{VOFF}, 4, v0')
        nrec = NGRP * 4096
    A('  s_mov_b32 s32, 0')
    A('  s_waitcnt lgkmcnt(0)')
    A('  s_add_u32 s16, s6, s37')
    A('  s_addc_u32 s17, s7, s38')
    A(f'  s_mov_b32 s18, {nrec}')
    A('  s_mov_b32 s19, 0x00020000')
    A('  s_add_u32 s20, s8, s37')
    A('  s_addc_u32 s21, s9, s38')
    A(f'  s_mov_b32 s22, {nrec}')
    A('  s_mov_b32 s23, 0x00020000')
    A('  s_lshl_b32 s39, s2, 8')
    A('  s_add_u32 s24, s4, s39')
    A('  s_addc_u32 s25, s5, 0')
    A('  s_mov_b32 s26, 256')
    A('  s_mov_b32 s27, 0x00020000')
    A('  v_and_b32 v13, 15, v0')
    A('  v_lshlrev_b32 v14, 4, v13')
    A(f'  buffer_load_dwordx4 v[{Q}:{Q+3}], v14, s[24:27], 0 offen')

    def load_k(b, soff):
        for n in range(4):
            r = kreg(b, n)
            yield f'  buffer_load_dwordx4 v[{r}:{r+3}], v{VOFF}, s[16:19], {soff} offen offset:{n*1024} {kpol}'.rstrip()
    def load_v(b, soff):
        for n in range(4):
            r = vreg(b, n)
            yield f'  buffer_load_dwordx4 v[{r}:{r+3}], v{VOFF}, s[20:23], {soff} offen offset:{n*1024} {vpol}'.rstrip()

    for b in range(NG):
        for x in load_k(b, 's32'): A(x)
        for x in load_v(b, 's32'): A(x)
        A(f'  s_add_u32 s32, s32, {gstride}')
    A('  s_add_u32 s28, s10, s39')
    A('  s_addc_u32 s29, s11, 0')
    A('  s_mov_b32 s30, 256')
    A('  s_mov_b32 s31, 0x00020000')
    A(f'  s_mov_b32 s34, 0x{f32bits(c):08x}')
    A('  v_and_b32 v13, 1, v0')
    A('  v_cmp_eq_u32 vcc, 1, v13')
    A('  v_mov_b32 v14, 0xffff')
    A('  v_mov_b32 v15, 0xffff0000')
    A(f'  v_cndmask_b32 v{T}, v14, v15, vcc')
    A('  v_bfe_u32 v13, v0, 1, 2')
    for r in range(4):
        A(f'  v_cmp_eq_u32 vcc, {r}, v13')
        A('  s_nop 1')
        A(f'  v_cndmask_b32 v{MSK+r}, 0, v{T}, vcc')
    A(f'  v_mov_b32 v{M}, 0xff7fffff')
    A(f'  v_mov_b32 v{MC}, 0')
    A(f'  v_mov_b32 v{LS}, 0')
    for r in range(8):
        A(f'  v_mov_b32 v{ACL+r}, 0')
    A(f'  s_mov_b32 s33, {NGRP//NG - 1}')

    rare = []
    site = [0]
    def group(b, more, k_wait, v_wait):
        sid = site[0]; site[0] += 1
        A(f'  s_waitcnt vmcnt({k_wait})')
        kl = list(load_k(b, 's32')) if more else []
        vl = list(load_v(b, 's32')) if more else []
        if not compute:
            for n in range(4):
                A(f'  v_or_b32 v{S0}, v{kreg(b,n)}, v{S0}')
            for x in kl: A(x)
            A(f'  s_waitcnt vmcnt({v_wait})')
            for n in range(4):
                A(f'  v_or_b32 v{S0}, v{vreg(b,n)}, v{S0}')
            for x in vl: A(x)
            if more: A(f'  s_add_u32 s32, s32, {gstride}')
            return
        for r in range(4):
            for n in range(4):
                src2 = '0' if r == 0 else f'v{S0+n}'
                A(f'  v_dot2_f32_bf16 v{S0+n}, v{kreg(b,n)+r}, v{Q+r}, {src2}')
        def filler(i):
            A(kl[i] if more else '  s_nop 0')
        filler(0); filler(1)
        A(f'  v_add_f32_dpp v{Y}, v{S0+0}, v{S0+0} row_mirror row_mask:0xf bank_mask:0x3')
        A(f'  v_add_f32_dpp v{Y}, v{S0+2}, v{S0+2} row_mirror row_mask:0xf bank_mask:0xc')
        A(f'  v_add_f32_dpp v{Z}, v{S0+1}, v{S0+1} row_mirror row_mask:0xf bank_mask:0x3')
        A(f'  v_add_f32_dpp v{Z}, v{S0+3}, v{S0+3} row_mirror row_mask:0xf bank_mask:0xc')
        filler(2)
        A(f'  v_add_f32_dpp v{S}, v{Y}, v{Y} row_half_mirror row_mask:0xf bank_mask:0x5')
        A(f'  v_add_f32_dpp v{S}, v{Z}, v{Z} row_half_mirror row_mask:0xf bank_mask:0xa')
        filler(3)
        A('  s_nop 0')
        A(f'  v_add_f32_dpp v{S}, v{S}, v{S} quad_perm:[2,3,0,1] row_mask:0xf bank_mask:0xf')
        A('  s_nop 1')
        A(f'  v_add_f32_dpp v{S}, v{S}, v{S} quad_perm:[1,0,3,2] row_mask:0xf bank_mask:0xf')
        A(f'  v_cmp_gt_f32 vcc, v{S}, v{M}')
        A(f'  s_cbranch_vccnz L_rare{sid}')
        A(f'L_back{sid}:')
        A(f'  v_fma_f32 v{P}, v{S}, s34, -v{MC}')
        A(f'  v_exp_f32 v{P}, v{P}')
        A('  s_nop 0')
        A(f'  v_cvt_pk_bf16_f32 v{PP}, v{P}, v{P}')
        A(f'  v_add_f32 v{LS}, v{LS}, v{P}')
        A(f'  v_and_b32 v{PA+0}, v{PP}, v{MSK+0}')
        A(f'  v_and_b32 v{PA+1}, v{PP}, v{MSK+1}')
        A(f'  v_and_b32 v{PB+2}, v{PP}, v{MSK+2}')
        A(f'  v_and_b32 v{PB+3}, v{PP}, v{MSK+3}')
        hm = 'row_half_mirror row_mask:0xf bank_mask:0xf'
        A(f'  v_and_b32_dpp v{PA+2}, v{PP}, v{MSK+2} {hm}')
        A(f'  v_and_b32_dpp v{PA+3}, v{PP}, v{MSK+3} {hm}')
        A(f'  v_and_b32_dpp v{PB+0}, v{PP}, v{MSK+0} {hm}')
        A(f'  v_and_b32_dpp v{PB+1}, v{PP}, v{MSK+1} {hm}')
        A(f'  s_waitcnt vmcnt({v_wait})')
        def mf(acc, p, n):
            r = vreg(b, n)
            A(f'  v_mfma_f32_16x16x32_bf16 v[{acc}:{acc+3}], v[{p}:{p+3}], v[{r}:{r+3}], v[{acc}:{acc+3}]')
        mf(ACL, PA, 0); mf(ACH, PA, 2); mf(ACL, PB, 1); mf(ACH, PB, 3)
        for x in vl: A(x)
        if more: A(f'  s_add_u32 s32, s32, {gstride}')
        R = rare.append
        R(f'L_rare{sid}:')
        R(f'  v_max_f32_dpp v{T}, v{S}, v{S} row_half_mirror row_mask:0xf bank_mask:0xf')
        R('  s_nop 1')
        R(f'  v_max_f32_dpp v{T}, v{T}, v{T} row_mirror row_mask:0xf bank_mask:0xf')
        R('  s_nop 1')
        for i in range(4):
            R(f'  v_readlane_b32 s{40+i}, v{T}, {16*i}')
        R('  s_nop 1')
        R(f'  v_max_f32 v{T}, s40, v{M}')
        for i in range(1, 4):
            R(f'  v_max_f32 v{T}, s{40+i}, v{T}')
        R(f'  v_sub_f32 v{U}, v{M}, v{T}')
        R(f'  v_mul_f32 v{U}, s34, v{U}')
        R(f'  v_exp_f32 v{U}, v{U}')
        R(f'  v_mov_b32 v{M}, v{T}')
        R(f'  v_mul_f32 v{MC}, s34, v{T}')
        R(f'  v_mul_f32 v{LS}, v{U}, v{LS}')
        for r in range(8):
            R(f'  v_mul_f32 v{ACL+r}, v{U}, v{ACL+r}')
        R(f'  s_branch L_back{sid}')

    full = 8 * NG - 4
    if stamps == 2:
        A('  s_mov_b32 m0, 0')
        A('  v_mov_b32 v44, 0')
    A('L_loop:')
    for b in range(NG):
        group(b, True, full, full)
    if stamps == 2:
        A('  s_memrealtime s[46:47]')
        A('  s_waitcnt lgkmcnt(0)')
        A('  v_writelane_b32 v44, s46, m0')
        A('  s_add_u32 m0, m0, 1')
    A('  s_sub_u32 s33, s33, 1')
    A('  s_cmp_lg_u32 s33, 0')
    A('  s_cbranch_scc1 L_loop')
    for b in range(NG):
        rem = 8 * (NG - 1 - b)
        group(b, False, rem + 4, rem)

    A('  s_nop 7')
    A('  s_nop 7')
    A(f'  v_add_f32_dpp v{T}, v{LS}, v{LS} row_half_mirror row_mask:0xf bank_mask:0xf')
    A('  s_nop 1')
    A(f'  v_add_f32_dpp v{T}, v{T}, v{T} row_mirror row_mask:0xf bank_mask:0xf')
    A('  s_nop 1')
    for i in range(4):
        A(f'  v_readlane_b32 s{40+i}, v{T}, {16*i}')
    A('  s_nop 1')
    A(f'  v_mov_b32 v{MC}, s40')
    for i in range(1, 4):
        A(f'  v_add_f32 v{MC}, s{40+i}, v{MC}')
    A('  v_cmp_gt_u32 vcc, 32, v0')
    A('  s_nop 1')
    for r in range(4):
        A(f'  v_cndmask_b32 v{ACL+r}, v{ACH+r}, v{ACL+r}, vcc')
    A('  v_lshrrev_b32 v13, 5, v0')
    A('  v_lshlrev_b32 v13, 9, v13')
    A('  v_and_b32 v14, 15, v0')
    A('  v_lshl_add_u32 v13, v14, 5, v13')
    A('  v_bfe_u32 v14, v0, 4, 1')
    A('  v_lshl_add_u32 v13, v14, 4, v13')
    A('  s_lshl_b32 s39, s36, 10')
    A('  v_add_u32 v13, s39, v13')
    A(f'  ds_write_b128 v13, v[{ACL}:{ACL+3}]')
    A('  s_lshl_b32 s39, s36, 3')
    A(f'  s_add_u32 s39, s39, {NW*1024}')
    A('  v_mov_b32 v14, s39')
    A(f'  ds_write_b64 v14, v[{M}:{M+1}]')
    A('  s_waitcnt lgkmcnt(0)')
    if stamps:
        A('  s_memrealtime s[46:47]')
        A('  s_getreg_b32 s48, hwreg(HW_REG_XCC_ID)')
        A('  s_getreg_b32 s49, hwreg(HW_REG_HW_ID)')
        A('  s_mov_b32 s52, s14')
        A('  s_mov_b32 s53, s15')
        A('  s_mov_b32 s54, 0x400000')
        A('  s_mov_b32 s55, 0x00020000')
        A(f'  s_mul_i32 s50, s2, {NW}')
        A('  s_add_u32 s50, s50, s36')
        A('  s_lshl_b32 s50, s50, 4')
        A('  s_waitcnt lgkmcnt(0)')
        if stamps == 2:
            A('  v_writelane_b32 v44, s46, m0')
            A('  v_writelane_b32 v44, s44, 62')
            A('  v_writelane_b32 v44, s48, 63')
            A('  s_lshl_b32 s51, s50, 4')
            A('  s_add_u32 s51, s51, 0x80000')
            A('  v_lshlrev_b32 v14, 2, v0')
            A('  v_add_u32 v14, s51, v14')
            A('  buffer_store_dword v44, v14, s[52:55], 0 offen')
            A('  s_nop 1')
        A('  v_mov_b32 v44, s44')
        A('  v_mov_b32 v45, s46')
        A('  v_mov_b32 v46, s48')
        A('  v_mov_b32 v47, s49')
        A('  v_mov_b32 v14, s50')
        A('  buffer_store_dwordx4 v[44:47], v14, s[52:55], 0 offen')
    A('  s_barrier')
    A('  s_cmp_ge_u32 s36, 1')
    A('  s_cbranch_scc1 L_end')
    ST = BUF
    CH = min(NW, 4)
    OV = BUF + 2 * NW
    A(f'  v_mov_b32 v14, {NW*1024}')
    for w in range(NW):
        A(f'  ds_read_b64 v[{ST+2*w}:{ST+2*w+1}], v14 offset:{w*8}')
        if w % 8 == 7: A('  s_waitcnt lgkmcnt(0)')
    A('  v_lshlrev_b32 v13, 3, v0')
    def rd(c0):
        for w in range(c0, c0 + CH):
            r = OV + 4 * (w % (2 * CH))
            A(f'  ds_read2_b64 v[{r}:{r+3}], v13 offset0:0 offset1:64')
            A('  v_add_u32 v13, 0x400, v13')
    rd(0)
    A(f'  s_waitcnt lgkmcnt({CH})')
    A(f'  v_mov_b32 v{M}, v{ST}')
    for w in range(1, NW):
        A(f'  v_max_f32 v{M}, v{M}, v{ST+2*w}')
    A(f'  v_mov_b32 v{LS}, 0')
    A(f'  v_mov_b32 v{T}, 0')
    A(f'  v_mov_b32 v{U}, 0')
    for w in range(NW):
        A(f'  v_sub_f32 v{ST+2*w}, v{ST+2*w}, v{M}')
        A(f'  v_mul_f32 v{ST+2*w}, s34, v{ST+2*w}')
        A(f'  v_exp_f32 v{ST+2*w}, v{ST+2*w}')
    A('  s_nop 0')
    for w in range(NW):
        A(f'  v_fmac_f32 v{LS}, v{ST+2*w}, v{ST+2*w+1}')
    A(f'  v_rcp_f32 v{LS}, v{LS}')
    for c0 in range(0, NW, CH):
        if c0 + CH < NW:
            rd(c0 + CH)
            A(f'  s_waitcnt lgkmcnt({CH})')
        else:
            A('  s_waitcnt lgkmcnt(0)')
        for w in range(c0, c0 + CH):
            r = OV + 4 * (w % (2 * CH))
            A(f'  v_add_f32 v{r}, v{r}, v{r+2}')
            A(f'  v_add_f32 v{r+1}, v{r+1}, v{r+3}')
            A(f'  v_fmac_f32 v{T}, v{ST+2*w}, v{r}')
            A(f'  v_fmac_f32 v{U}, v{ST+2*w}, v{r+1}')
    A(f'  v_mul_f32 v{T}, v{T}, v{LS}')
    A(f'  v_mul_f32 v{U}, v{U}, v{LS}')
    A(f'  v_cvt_pk_bf16_f32 v{T}, v{T}, v{U}')
    A('  v_lshlrev_b32 v15, 2, v0')
    A(f'  buffer_store_dword v{T}, v15, s[28:31], 0 offen')
    A('L_end:')
    A('  s_endpgm')
    L.extend(rare)
    A('.section .rodata,"a"')
    A('.p2align 6')
    A(f'.amdhsa_kernel {name}')
    A(f'  .amdhsa_next_free_vgpr {nvgpr}')
    A('  .amdhsa_next_free_sgpr 64')
    A(f'  .amdhsa_accum_offset {(nvgpr+3)//4*4}')
    A('  .amdhsa_group_segment_fixed_size 0')
    A('  .amdhsa_kernarg_size 48')
    A('  .amdhsa_user_sgpr_count 2')
    A('  .amdhsa_user_sgpr_kernarg_segment_ptr 1')
    A('  .amdhsa_system_sgpr_workgroup_id_x 1')
    A('.end_amdhsa_kernel')
    return '\n'.join(L) + '\n'

if __name__ == '__main__':
    sys.stdout.write(gen())
```

```python
import math, struct, sys
from gen import HEADER, f32bits

def gen4(NW=1, R=24, pol='nt', ldsmin=90000, stamps=0, name='standalone__mha_softmax__sampling_kernel',
         fine=True, kpol=None, vpol=None, headmap=None):
    if kpol is None: kpol = pol
    if vpol is None: vpol = pol
    G = 512 // NW
    TOT = 8 * G
    Pd = (R * 8 // math.gcd(R, 8)) // 8
    nit = (TOT - R) // (8 * Pd)
    L = []; A = L.append
    c = (128 ** -0.5) * math.log2(math.e)
    lds = max(NW * 1024 + NW * 8, ldsmin)
    A(HEADER.rstrip())
    A(f"; @launch grid=(256,1,1) block=({NW*64},1,1) lds={lds}")
    A('.amdgcn_target "amdgcn-amd-amdhsa--gfx950"')
    A('.text'); A(f'.globl {name}'); A('.p2align 8'); A(f'.type {name},@function'); A(f'{name}:')
    Q, MSK, M, MC, LS = 2, 6, 10, 11, 12
    ACL, ACH = 16, 20
    S0, Y, Z, S, P, PP, T, U = 24, 28, 29, 30, 31, 32, 33, 34
    PA, PB = 36, 40
    gs = NW * 4096
    ahead = sorted({(j + R) // 8 for j in range(8)})
    VOFFS = {k: 44 + i for i, k in enumerate(ahead)}
    V0OFF = 1
    BUF = 48
    slot = lambda p: BUF + 4 * (p % R)
    nvgpr = max(BUF + 4 * R, BUF + 2 * NW + 8 * min(NW, 4))
    A('  s_cmp_ge_u32 s2, 256')
    A('  s_cbranch_scc1 L_end')
    A('  s_load_dwordx8 s[4:11], s[0:1], 0')
    if stamps:
        A('  s_memrealtime s[44:45]')
        A('  s_load_dwordx2 s[14:15], s[0:1], 40')
    A('  v_readfirstlane_b32 s36, v0')
    A('  v_and_b32 v0, 63, v0')
    A(f'  v_lshlrev_b32 v{V0OFF}, 4, v0')
    A('  s_lshr_b32 s36, s36, 6')
    A('  s_lshl_b32 s32, s2, 21')
    A('  s_lshl_b32 s39, s36, 12')
    A('  s_add_u32 s32, s32, s39')
    A('  s_mov_b32 s33, s32')
    A('  s_lshl_b32 s39, s2, 8')
    A('  v_and_b32 v13, 15, v0')
    A('  v_lshlrev_b32 v14, 4, v13')
    A('  s_mov_b32 s18, 0x20000000'); A('  s_mov_b32 s19, 0x00020000')
    A('  s_mov_b32 s22, 0x20000000'); A('  s_mov_b32 s23, 0x00020000')
    A('  s_mov_b32 s26, 0x10000'); A('  s_mov_b32 s27, 0x00020000')
    A('  s_waitcnt lgkmcnt(0)')
    A('  s_mov_b32 s16, s6'); A('  s_mov_b32 s17, s7')
    A('  s_mov_b32 s20, s8'); A('  s_mov_b32 s21, s9')
    A('  s_mov_b32 s24, s4'); A('  s_mov_b32 s25, s5')
    def ld(p, voff, soff):
        j = p % 8; r = slot(p)
        srd, pl = ('s[16:19]', kpol) if j < 4 else ('s[20:23]', vpol)
        return f'  buffer_load_dwordx4 v[{r}:{r+3}], v{voff}, {srd}, {soff} offen offset:{(j&3)*1024} {pl}'.rstrip()
    A(f'  buffer_load_dwordx4 v[{Q}:{Q+3}], v14, s[24:27], s39 offen')
    for p in range(R):
        A(ld(p, V0OFF, 's33'))
        if p % 8 == 7: A(f'  s_add_u32 s33, s33, {gs}')
    for k, r in VOFFS.items():
        A(f'  v_add_u32 v{r}, {k*gs}, v{V0OFF}')
    A('  s_mov_b32 s28, s10'); A('  s_mov_b32 s29, s11'); A('  s_mov_b32 s30, 0x10000'); A('  s_mov_b32 s31, 0x00020000')
    A(f'  s_mov_b32 s34, 0x{f32bits(c):08x}')
    A('  v_and_b32 v13, 1, v0')
    A('  v_cmp_eq_u32 vcc, 1, v13')
    A('  v_mov_b32 v14, 0xffff')
    A('  v_mov_b32 v15, 0xffff0000')
    A(f'  v_cndmask_b32 v{T}, v14, v15, vcc')
    A('  v_bfe_u32 v13, v0, 1, 2')
    for r in range(4):
        A(f'  v_cmp_eq_u32 vcc, {r}, v13'); A('  s_nop 1'); A(f'  v_cndmask_b32 v{MSK+r}, 0, v{T}, vcc')
    A(f'  v_mov_b32 v{M}, 0xff7fffff'); A(f'  v_mov_b32 v{MC}, 0'); A(f'  v_mov_b32 v{LS}, 0')
    for r in range(8): A(f'  v_mov_b32 v{ACL+r}, 0')
    A(f'  s_mov_b32 s35, {nit}')
    rare = []; Rr = rare.append
    site = [0]
    def refill(p, steady):
        if steady or p + R < TOT:
            return ld(p + R, VOFFS[(p % 8 + R) // 8], 's32')
        return '  s_nop 0'
    def wait(p, issued_upto, steady):
        last = issued_upto - 1 + R
        if not steady: last = min(last, TOT - 1)
        return f'  s_waitcnt vmcnt({last - p})'
    def group(t, steady):
        sid = site[0]; site[0] += 1
        p0 = 8 * t
        if fine:
            for n in range(4):
                A(wait(p0 + n, p0 + n, steady))
                for r in range(4):
                    src2 = '0' if r == 0 else f'v{S0+n}'
                    A(f'  v_dot2_f32_bf16 v{S0+n}, v{slot(p0+n)+r}, v{Q+r}, {src2}')
                A(refill(p0 + n, steady))
            A(f'  v_add_f32_dpp v{Y}, v{S0+0}, v{S0+0} row_mirror row_mask:0xf bank_mask:0x3')
            A(f'  v_add_f32_dpp v{Z}, v{S0+1}, v{S0+1} row_mirror row_mask:0xf bank_mask:0x3')
            A(f'  v_add_f32_dpp v{Y}, v{S0+2}, v{S0+2} row_mirror row_mask:0xf bank_mask:0xc')
            A(f'  v_add_f32_dpp v{Z}, v{S0+3}, v{S0+3} row_mirror row_mask:0xf bank_mask:0xc')
            A('  s_nop 0')
            A(f'  v_add_f32_dpp v{S}, v{Y}, v{Y} row_half_mirror row_mask:0xf bank_mask:0x5')
            A(f'  v_add_f32_dpp v{S}, v{Z}, v{Z} row_half_mirror row_mask:0xf bank_mask:0xa')
            A('  s_nop 1')
        else:
            A(wait(p0 + 3, p0, steady))
            for r in range(4):
                for n in range(4):
                    src2 = '0' if r == 0 else f'v{S0+n}'
                    A(f'  v_dot2_f32_bf16 v{S0+n}, v{slot(p0+n)+r}, v{Q+r}, {src2}')
            A(refill(p0, steady)); A(refill(p0 + 1, steady))
            A(f'  v_add_f32_dpp v{Y}, v{S0+0}, v{S0+0} row_mirror row_mask:0xf bank_mask:0x3')
            A(f'  v_add_f32_dpp v{Y}, v{S0+2}, v{S0+2} row_mirror row_mask:0xf bank_mask:0xc')
            A(f'  v_add_f32_dpp v{Z}, v{S0+1}, v{S0+1} row_mirror row_mask:0xf bank_mask:0x3')
            A(f'  v_add_f32_dpp v{Z}, v{S0+3}, v{S0+3} row_mirror row_mask:0xf bank_mask:0xc')
            A(refill(p0 + 2, steady))
            A(f'  v_add_f32_dpp v{S}, v{Y}, v{Y} row_half_mirror row_mask:0xf bank_mask:0x5')
            A(f'  v_add_f32_dpp v{S}, v{Z}, v{Z} row_half_mirror row_mask:0xf bank_mask:0xa')
            A(refill(p0 + 3, steady))
            A('  s_nop 0')
        A(f'  v_add_f32_dpp v{S}, v{S}, v{S} quad_perm:[2,3,0,1] row_mask:0xf bank_mask:0xf')
        A('  s_nop 1')
        A(f'  v_add_f32_dpp v{S}, v{S}, v{S} quad_perm:[1,0,3,2] row_mask:0xf bank_mask:0xf')
        A(f'  v_cmp_gt_f32 vcc, v{S}, v{M}')
        A(f'  s_cbranch_vccnz L_rare{sid}')
        A(f'L_back{sid}:')
        A(f'  v_fma_f32 v{P}, v{S}, s34, -v{MC}')
        A(f'  v_exp_f32 v{P}, v{P}')
        A('  s_nop 0')
        A(f'  v_cvt_pk_bf16_f32 v{PP}, v{P}, v{P}')
        A(f'  v_add_f32 v{LS}, v{LS}, v{P}')
        A(f'  v_and_b32 v{PA+0}, v{PP}, v{MSK+0}')
        A(f'  v_and_b32 v{PA+1}, v{PP}, v{MSK+1}')
        A(f'  v_and_b32 v{PB+2}, v{PP}, v{MSK+2}')
        A(f'  v_and_b32 v{PB+3}, v{PP}, v{MSK+3}')
        hm = 'row_half_mirror row_mask:0xf bank_mask:0xf'
        A(f'  v_and_b32_dpp v{PA+2}, v{PP}, v{MSK+2} {hm}')
        A(f'  v_and_b32_dpp v{PA+3}, v{PP}, v{MSK+3} {hm}')
        A(f'  v_and_b32_dpp v{PB+0}, v{PP}, v{MSK+0} {hm}')
        A(f'  v_and_b32_dpp v{PB+1}, v{PP}, v{MSK+1} {hm}')
        mf = lambda acc, p, n: f'  v_mfma_f32_16x16x32_bf16 v[{acc}:{acc+3}], v[{p}:{p+3}], v[{slot(p0+4+n)}:{slot(p0+4+n)+3}], v[{acc}:{acc+3}]'
        if fine:
            for n, (acc, p) in enumerate(((ACL, PA), (ACL, PB), (ACH, PA), (ACH, PB))):
                A(wait(p0 + 4 + n, p0 + 4 + n, steady))
                A(mf(acc, p, n))
                A(refill(p0 + 4 + n, steady))
        else:
            A(wait(p0 + 7, p0 + 4, steady))
            for acc, p, n in ((ACL, PA, 0), (ACH, PA, 2), (ACL, PB, 1), (ACH, PB, 3)): A(mf(acc, p, n))
            for n in range(4): A(refill(p0 + 4 + n, steady))
        A(f'  s_add_u32 s32, s32, {gs}')
        Rr(f'L_rare{sid}:')
        Rr(f'  v_max_f32_dpp v{T}, v{S}, v{S} row_half_mirror row_mask:0xf bank_mask:0xf')
        Rr('  s_nop 1')
        Rr(f'  v_max_f32_dpp v{T}, v{T}, v{T} row_mirror row_mask:0xf bank_mask:0xf')
        Rr('  s_nop 1')
        for i in range(4): Rr(f'  v_readlane_b32 s{40+i}, v{T}, {16*i}')
        Rr('  s_nop 1')
        Rr(f'  v_max_f32 v{T}, s40, v{M}')
        for i in range(1, 4): Rr(f'  v_max_f32 v{T}, s{40+i}, v{T}')
        Rr(f'  v_sub_f32 v{U}, v{M}, v{T}')
        Rr(f'  v_mul_f32 v{U}, s34, v{U}')
        Rr(f'  v_exp_f32 v{U}, v{U}')
        Rr(f'  v_mov_b32 v{M}, v{T}')
        Rr(f'  v_mul_f32 v{MC}, s34, v{T}')
        Rr(f'  v_mul_f32 v{LS}, v{U}, v{LS}')
        for r in range(8): Rr(f'  v_mul_f32 v{ACL+r}, v{U}, v{ACL+r}')
        Rr(f'  s_branch L_back{sid}')
    A('L_loop:')
    for t in range(Pd): group(t, True)
    A('  s_sub_u32 s35, s35, 1')
    A('  s_cmp_lg_u32 s35, 0')
    A('  s_cbranch_scc1 L_loop')
    for t in range(Pd * nit, G): group(t, False)
    A('  s_nop 7'); A('  s_nop 7')
    A(f'  v_add_f32_dpp v{T}, v{LS}, v{LS} row_half_mirror row_mask:0xf bank_mask:0xf')
    A('  s_nop 1')
    A(f'  v_add_f32_dpp v{T}, v{T}, v{T} row_mirror row_mask:0xf bank_mask:0xf')
    A('  s_nop 1')
    for i in range(4): A(f'  v_readlane_b32 s{40+i}, v{T}, {16*i}')
    A('  s_nop 1')
    A(f'  v_mov_b32 v{MC}, s40')
    for i in range(1, 4): A(f'  v_add_f32 v{MC}, s{40+i}, v{MC}')
    A('  v_cmp_gt_u32 vcc, 32, v0')
    A('  s_nop 1')
    for r in range(4): A(f'  v_cndmask_b32 v{ACL+r}, v{ACH+r}, v{ACL+r}, vcc')
    A('  v_lshrrev_b32 v13, 5, v0')
    A('  v_lshlrev_b32 v13, 9, v13')
    A('  v_and_b32 v14, 15, v0')
    A('  v_lshl_add_u32 v13, v14, 5, v13')
    A('  v_bfe_u32 v14, v0, 4, 1')
    A('  v_lshl_add_u32 v13, v14, 4, v13')
    A('  s_lshl_b32 s37, s36, 10')
    A('  v_add_u32 v13, s37, v13')
    A(f'  ds_write_b128 v13, v[{ACL}:{ACL+3}]')
    A('  s_lshl_b32 s37, s36, 3')
    A(f'  s_add_u32 s37, s37, {NW*1024}')
    A('  v_mov_b32 v14, s37')
    A(f'  ds_write_b64 v14, v[{M}:{M+1}]')
    A('  s_waitcnt lgkmcnt(0)')
    if stamps:
        A('  s_memrealtime s[46:47]')
        A('  s_getreg_b32 s48, hwreg(HW_REG_XCC_ID)')
        A('  s_getreg_b32 s49, hwreg(HW_REG_HW_ID)')
        A('  s_mov_b32 s52, s14'); A('  s_mov_b32 s53, s15'); A('  s_mov_b32 s54, 0x400000'); A('  s_mov_b32 s55, 0x00020000')
        A(f'  s_mul_i32 s50, s2, {NW}'); A('  s_add_u32 s50, s50, s36'); A('  s_lshl_b32 s50, s50, 4')
        A('  s_waitcnt lgkmcnt(0)')
        A('  v_mov_b32 v44, s44'); A('  v_mov_b32 v45, s46'); A('  v_mov_b32 v46, s48'); A('  v_mov_b32 v47, s49'); A('  v_mov_b32 v14, s50')
        A('  buffer_store_dwordx4 v[44:47], v14, s[52:55], 0 offen')
    if NW > 1:
        A('  s_barrier')
        A('  s_cmp_ge_u32 s36, 1')
        A('  s_cbranch_scc1 L_end')
    ST = BUF; CH = min(NW, 4); OV = BUF + 2 * NW
    A(f'  v_mov_b32 v14, {NW*1024}')
    for w in range(NW):
        A(f'  ds_read_b64 v[{ST+2*w}:{ST+2*w+1}], v14 offset:{w*8}')
        if w % 8 == 7: A('  s_waitcnt lgkmcnt(0)')
    A('  v_lshlrev_b32 v13, 3, v0')
    def rd(c0):
        for w in range(c0, c0 + CH):
            r = OV + 4 * (w % (2 * CH))
            A(f'  ds_read2_b64 v[{r}:{r+3}], v13 offset0:0 offset1:64')
            A('  v_add_u32 v13, 0x400, v13')
    rd(0)
    A(f'  s_waitcnt lgkmcnt({CH})')
    A(f'  v_mov_b32 v{M}, v{ST}')
    for w in range(1, NW): A(f'  v_max_f32 v{M}, v{M}, v{ST+2*w}')
    A(f'  v_mov_b32 v{LS}, 0'); A(f'  v_mov_b32 v{T}, 0'); A(f'  v_mov_b32 v{U}, 0')
    for w in range(NW):
        A(f'  v_sub_f32 v{ST+2*w}, v{ST+2*w}, v{M}')
        A(f'  v_mul_f32 v{ST+2*w}, s34, v{ST+2*w}')
        A(f'  v_exp_f32 v{ST+2*w}, v{ST+2*w}')
    A('  s_nop 0')
    for w in range(NW): A(f'  v_fmac_f32 v{LS}, v{ST+2*w}, v{ST+2*w+1}')
    A(f'  v_rcp_f32 v{LS}, v{LS}')
    for c0 in range(0, NW, CH):
        if c0 + CH < NW:
            rd(c0 + CH); A(f'  s_waitcnt lgkmcnt({CH})')
        else:
            A('  s_waitcnt lgkmcnt(0)')
        for w in range(c0, c0 + CH):
            r = OV + 4 * (w % (2 * CH))
            A(f'  v_add_f32 v{r}, v{r}, v{r+2}')
            A(f'  v_add_f32 v{r+1}, v{r+1}, v{r+3}')
            A(f'  v_fmac_f32 v{T}, v{ST+2*w}, v{r}')
            A(f'  v_fmac_f32 v{U}, v{ST+2*w}, v{r+1}')
    A(f'  v_mul_f32 v{T}, v{T}, v{LS}')
    A(f'  v_mul_f32 v{U}, v{U}, v{LS}')
    A(f'  v_cvt_pk_bf16_f32 v{T}, v{T}, v{U}')
    A('  v_lshlrev_b32 v15, 2, v0')
    A(f'  buffer_store_dword v{T}, v15, s[28:31], s39 offen')
    A('L_end:')
    A('  s_endpgm')
    L.extend(rare)
    A('.section .rodata,"a"'); A('.p2align 6')
    A(f'.amdhsa_kernel {name}')
    A(f'  .amdhsa_next_free_vgpr {nvgpr}')
    A('  .amdhsa_next_free_sgpr 64')
    A(f'  .amdhsa_accum_offset {(nvgpr+3)//4*4}')
    A('  .amdhsa_group_segment_fixed_size 0')
    A('  .amdhsa_kernarg_size 48')
    A('  .amdhsa_user_sgpr_count 2')
    A('  .amdhsa_user_sgpr_kernarg_segment_ptr 1')
    A('  .amdhsa_system_sgpr_workgroup_id_x 1')
    A('.end_amdhsa_kernel')
    return '\n'.join(L) + '\n'
```

```python
import math, struct, sys
from gen import HEADER, f32bits

def gen5(NW=1, R=32, W=20, WB=32, NB=32, pol='nt', ldsmin=90000, stamps=0, clk=False,
         name='standalone__mha_softmax__sampling_kernel', null=False, W0=None, N0=0, rot=0):
    assert R % 8 == 0 and W <= R and WB <= R
    G = 512 // NW
    Pd = R // 8
    assert G % Pd == 0 and NB % Pd == 0 and N0 % Pd == 0
    phases = []
    if N0: phases.append((W0, N0 // Pd))
    phases.append((W, (G - NB - N0) // Pd))
    if NB: phases.append((WB, NB // Pd))
    L = []; A = L.append
    c = (128 ** -0.5) * math.log2(math.e)
    lds = max(NW * 1024 + NW * 8, ldsmin)
    A(HEADER.rstrip())
    A(f"; @launch grid=(256,1,1) block=({NW*64},1,1) lds={lds}")
    A('.amdgcn_target "amdgcn-amd-amdhsa--gfx950"')
    A('.text'); A(f'.globl {name}'); A('.p2align 8'); A(f'.type {name},@function'); A(f'{name}:')
    Q, MSK, M, MC, LS = 2, 6, 10, 11, 12
    ACL, ACH = 16, 20
    S0, Y, Z, S, P, PP, T, U = 24, 28, 29, 30, 31, 32, 33, 34
    PA, PB = 36, 40
    gs = NW * 4096
    ahead = sorted({(j + w) // 8 for j in range(-1, 8) for w in range(min(p[0] for p in phases), max(p[0] for p in phases) + 1)})
    VOFFS = {k: 44 + i for i, k in enumerate(ahead)}
    assert len(ahead) <= 8
    V0OFF = 1
    BUF = 52
    slot = lambda p: BUF + 4 * (p % R)
    nvgpr = max(BUF + 4 * R, BUF + 2 * NW + 8 * min(NW, 4))
    A('  s_cmp_ge_u32 s2, 256')
    A('  s_cbranch_scc1 L_end')
    A('  s_load_dwordx8 s[4:11], s[0:1], 0')
    if stamps:
        A('  s_memrealtime s[44:45]')
        if clk: A('  s_memtime s[56:57]')
        A('  s_load_dwordx2 s[14:15], s[0:1], 40')
    if NW > 1:
        A('  v_readfirstlane_b32 s36, v0')
        A('  v_and_b32 v0, 63, v0')
    A(f'  v_lshlrev_b32 v{V0OFF}, 4, v0')
    A('  s_lshl_b32 s37, s2, 21')
    A('  s_lshr_b32 s38, s2, 11')
    if NW > 1:
        A('  s_lshr_b32 s36, s36, 6')
        A('  s_lshl_b32 s32, s36, 12')
    else:
        A('  s_mov_b32 s32, 0')
    A('  s_mov_b32 s33, s32')
    A('  s_lshl_b32 s39, s2, 8')
    A('  v_and_b32 v13, 15, v0')
    A('  v_lshlrev_b32 v14, 4, v13')
    nrec = '0' if null else '0x200000'
    A(f'  s_mov_b32 s18, {nrec}'); A('  s_mov_b32 s19, 0x00020000')
    A(f'  s_mov_b32 s22, {nrec}'); A('  s_mov_b32 s23, 0x00020000')
    A('  s_mov_b32 s26, 0x10000'); A('  s_mov_b32 s27, 0x00020000')
    A('  s_waitcnt lgkmcnt(0)')
    A('  s_add_u32 s16, s6, s37'); A('  s_addc_u32 s17, s7, s38')
    A('  s_add_u32 s20, s8, s37'); A('  s_addc_u32 s21, s9, s38')
    A('  s_mov_b32 s24, s4'); A('  s_mov_b32 s25, s5')
    def ld(p, voff, soff):
        j = p % 8; r = slot(p)
        srd = 's[16:19]' if j < 4 else 's[20:23]'
        return f'  buffer_load_dwordx4 v[{r}:{r+3}], v{voff}, {srd}, {soff} offen offset:{(j&3)*1024} {pol}'.rstrip()
    Wst = phases[0][0]
    first = True
    for p in range(Wst):
        A(ld(p, V0OFF, 's33'))
        if p % 8 == 7: A(f'  s_add_u32 s33, s33, {gs}')
        if p == 4:
            A(f'  buffer_load_dwordx4 v[{Q}:{Q+3}], v14, s[24:27], s39 offen')
    for k, r in VOFFS.items():
        A(f'  v_add_u32 v{r}, {k*gs}, v{V0OFF}')
    A('  s_mov_b32 s28, s10'); A('  s_mov_b32 s29, s11'); A('  s_mov_b32 s30, 0x10000'); A('  s_mov_b32 s31, 0x00020000')
    A(f'  s_mov_b32 s34, 0x{f32bits(c):08x}')
    A('  v_and_b32 v13, 1, v0')
    A('  v_cmp_eq_u32 vcc, 1, v13')
    A('  v_mov_b32 v14, 0xffff')
    A('  v_mov_b32 v15, 0xffff0000')
    A(f'  v_cndmask_b32 v{T}, v14, v15, vcc')
    A('  v_bfe_u32 v13, v0, 1, 2')
    for r in range(4):
        A(f'  v_cmp_eq_u32 vcc, {r}, v13'); A('  s_nop 1'); A(f'  v_cndmask_b32 v{MSK+r}, 0, v{T}, vcc')
    A(f'  v_mov_b32 v{M}, 0xff7fffff'); A(f'  v_mov_b32 v{MC}, 0'); A(f'  v_mov_b32 v{LS}, 0')
    for r in range(8): A(f'  v_mov_b32 v{ACL+r}, 0')
    A(f'  s_waitcnt vmcnt({Wst - 5})')
    rare = []; Rr = rare.append
    site = [0]
    def group(t, w):
        sid = site[0]; site[0] += 1
        p0 = 8 * t
        refill = lambda p: ld(p + w, VOFFS[(p % 8 + w) // 8], 's32')
        wait = f'  s_waitcnt vmcnt({w - 1})'
        for n in range(4):
            A(wait)
            for r in range(4):
                src2 = '0' if r == 0 else f'v{S0+n}'
                A(f'  v_dot2_f32_bf16 v{S0+n}, v{slot(p0+n)+r}, v{Q+r}, {src2}')
            A(refill(p0 + n))
        A(f'  v_add_f32_dpp v{Y}, v{S0+0}, v{S0+0} row_mirror row_mask:0xf bank_mask:0x3')
        A(f'  v_add_f32_dpp v{Z}, v{S0+1}, v{S0+1} row_mirror row_mask:0xf bank_mask:0x3')
        A(f'  v_add_f32_dpp v{Y}, v{S0+2}, v{S0+2} row_mirror row_mask:0xf bank_mask:0xc')
        A(f'  v_add_f32_dpp v{Z}, v{S0+3}, v{S0+3} row_mirror row_mask:0xf bank_mask:0xc')
        A('  s_nop 0')
        A(f'  v_add_f32_dpp v{S}, v{Y}, v{Y} row_half_mirror row_mask:0xf bank_mask:0x5')
        A(f'  v_add_f32_dpp v{S}, v{Z}, v{Z} row_half_mirror row_mask:0xf bank_mask:0xa')
        A('  s_nop 1')
        A(f'  v_add_f32_dpp v{S}, v{S}, v{S} quad_perm:[2,3,0,1] row_mask:0xf bank_mask:0xf')
        A('  s_nop 1')
        A(f'  v_add_f32_dpp v{S}, v{S}, v{S} quad_perm:[1,0,3,2] row_mask:0xf bank_mask:0xf')
        A(f'  v_cmp_gt_f32 vcc, v{S}, v{M}')
        A(f'  s_cbranch_vccnz L_rare{sid}')
        A(f'L_back{sid}:')
        A(f'  v_fma_f32 v{P}, v{S}, s34, -v{MC}')
        A(f'  v_exp_f32 v{P}, v{P}')
        A('  s_nop 0')
        A(f'  v_cvt_pk_bf16_f32 v{PP}, v{P}, v{P}')
        A(f'  v_add_f32 v{LS}, v{LS}, v{P}')
        A(f'  v_and_b32 v{PA+0}, v{PP}, v{MSK+0}')
        A(f'  v_and_b32 v{PA+1}, v{PP}, v{MSK+1}')
        A(f'  v_and_b32 v{PB+2}, v{PP}, v{MSK+2}')
        A(f'  v_and_b32 v{PB+3}, v{PP}, v{MSK+3}')
        hm = 'row_half_mirror row_mask:0xf bank_mask:0xf'
        A(f'  v_and_b32_dpp v{PA+2}, v{PP}, v{MSK+2} {hm}')
        A(f'  v_and_b32_dpp v{PA+3}, v{PP}, v{MSK+3} {hm}')
        A(f'  v_and_b32_dpp v{PB+0}, v{PP}, v{MSK+0} {hm}')
        A(f'  v_and_b32_dpp v{PB+1}, v{PP}, v{MSK+1} {hm}')
        for n, (acc, p) in enumerate(((ACL, PA), (ACL, PB), (ACH, PA), (ACH, PB))):
            r = slot(p0 + 4 + n)
            A(wait)
            A(f'  v_mfma_f32_16x16x32_bf16 v[{acc}:{acc+3}], v[{p}:{p+3}], v[{r}:{r+3}], v[{acc}:{acc+3}]')
            A(refill(p0 + 4 + n))
        A(f'  s_add_u32 s32, s32, {gs}')
        Rr(f'L_rare{sid}:')
        Rr(f'  v_max_f32_dpp v{T}, v{S}, v{S} row_half_mirror row_mask:0xf bank_mask:0xf')
        Rr('  s_nop 1')
        Rr(f'  v_max_f32_dpp v{T}, v{T}, v{T} row_mirror row_mask:0xf bank_mask:0xf')
        Rr('  s_nop 1')
        for i in range(4): Rr(f'  v_readlane_b32 s{40+i}, v{T}, {16*i}')
        Rr('  s_nop 1')
        Rr(f'  v_max_f32 v{T}, s40, v{M}')
        for i in range(1, 4): Rr(f'  v_max_f32 v{T}, s{40+i}, v{T}')
        Rr(f'  v_sub_f32 v{U}, v{M}, v{T}')
        Rr(f'  v_mul_f32 v{U}, s34, v{U}')
        Rr(f'  v_exp_f32 v{U}, v{U}')
        Rr(f'  v_mov_b32 v{M}, v{T}')
        Rr(f'  v_mul_f32 v{MC}, s34, v{T}')
        Rr(f'  v_mul_f32 v{LS}, v{U}, v{LS}')
        for r in range(8): Rr(f'  v_mul_f32 v{ACL+r}, v{U}, v{ACL+r}')
        Rr(f'  s_branch L_back{sid}')
    prevw = Wst
    for ph, (w, its) in enumerate(phases):
        assert w >= prevw or ph == 0 or True
        skip = 0
        if w > prevw:
            for i in range(prevw, w):
                A(ld(i, VOFFS[i // 8], 's32'))
        elif w < prevw:
            raise NotImplementedError
        A(f'  s_mov_b32 s35, {its}')
        A(f'L_loop{ph}:')
        for t in range(Pd): group(t, w)
        A('  s_sub_u32 s35, s35, 1')
        A('  s_cmp_lg_u32 s35, 0')
        A(f'  s_cbranch_scc1 L_loop{ph}')
        prevw = w
    A('  s_nop 4')
    A(f'  v_add_f32_dpp v{T}, v{LS}, v{LS} row_half_mirror row_mask:0xf bank_mask:0xf')
    A('  s_nop 1')
    A(f'  v_add_f32_dpp v{T}, v{T}, v{T} row_mirror row_mask:0xf bank_mask:0xf')
    A('  s_nop 1')
    for i in range(4): A(f'  v_readlane_b32 s{40+i}, v{T}, {16*i}')
    A('  s_nop 1')
    A(f'  v_mov_b32 v{MC}, s40')
    for i in range(1, 4): A(f'  v_add_f32 v{MC}, s{40+i}, v{MC}')
    def stamp():
        A('  s_memrealtime s[46:47]')
        A('  s_getreg_b32 s48, hwreg(HW_REG_XCC_ID)')
        if clk:
            A('  s_memtime s[58:59]'); A('  s_waitcnt lgkmcnt(0)'); A('  s_sub_u32 s49, s58, s56')
        else:
            A('  s_getreg_b32 s49, hwreg(HW_REG_HW_ID)')
        A('  s_mov_b32 s52, s14'); A('  s_mov_b32 s53, s15'); A('  s_mov_b32 s54, 0x400000'); A('  s_mov_b32 s55, 0x00020000')
        A(f'  s_mul_i32 s50, s2, {NW}')
        if NW > 1: A('  s_add_u32 s50, s50, s36')
        A('  s_lshl_b32 s50, s50, 4')
        A('  s_waitcnt lgkmcnt(0)')
        A('  v_mov_b32 v44, s44'); A('  v_mov_b32 v45, s46'); A('  v_mov_b32 v46, s48'); A('  v_mov_b32 v47, s49'); A('  v_mov_b32 v14, s50')
        A('  buffer_store_dwordx4 v[44:47], v14, s[52:55], 0 offen')
    if NW == 1:
        A(f'  v_rcp_f32 v{MC}, v{MC}')
        for r in range(4): A(f'  v_permlane32_swap_b32 v{ACH+r}, v{PA+r}')
        A('  v_and_b32 v13, 15, v0')
        A('  v_lshlrev_b32 v13, 4, v13')
        A('  v_bfe_u32 v14, v0, 4, 1')
        A('  v_lshl_add_u32 v13, v14, 3, v13')
        A('  v_lshrrev_b32 v14, 5, v0')
        A('  v_lshl_add_u32 v13, v14, 30, v13')
        for r in range(4): A(f'  v_add_f32 v{PA+r}, v{PA+r}, v{ACL+r}')
        for r in range(4): A(f'  v_mul_f32 v{PA+r}, v{PA+r}, v{MC}')
        A(f'  v_cvt_pk_bf16_f32 v{PB}, v{PA}, v{PA+1}')
        A(f'  v_cvt_pk_bf16_f32 v{PB+1}, v{PA+2}, v{PA+3}')
        A(f'  buffer_store_dwordx2 v[{PB}:{PB+1}], v13, s[28:31], s39 offen')
        if stamps: stamp()
    else:
        A('  v_cmp_gt_u32 vcc, 32, v0')
        A('  s_nop 1')
        for r in range(4): A(f'  v_cndmask_b32 v{ACL+r}, v{ACH+r}, v{ACL+r}, vcc')
        A('  v_lshrrev_b32 v13, 5, v0')
        A('  v_lshlrev_b32 v13, 9, v13')
        A('  v_and_b32 v14, 15, v0')
        A('  v_lshl_add_u32 v13, v14, 5, v13')
        A('  v_bfe_u32 v14, v0, 4, 1')
        A('  v_lshl_add_u32 v13, v14, 4, v13')
        A('  s_lshl_b32 s37, s36, 10')
        A('  v_add_u32 v13, s37, v13')
        A(f'  ds_write_b128 v13, v[{ACL}:{ACL+3}]')
        A('  s_lshl_b32 s37, s36, 3')
        A(f'  s_add_u32 s37, s37, {NW*1024}')
        A('  v_mov_b32 v14, s37')
        A(f'  ds_write_b64 v14, v[{M}:{M+1}]')
        A('  s_waitcnt lgkmcnt(0)')
        if stamps: stamp()
        A('  s_barrier')
        A('  s_cmp_ge_u32 s36, 1')
        A('  s_cbranch_scc1 L_end')
        A('  s_waitcnt vmcnt(0)')
        ST = BUF; CH = min(NW, 4); OV = BUF + 2 * NW
        A(f'  v_mov_b32 v14, {NW*1024}')
        for w in range(NW):
            A(f'  ds_read_b64 v[{ST+2*w}:{ST+2*w+1}], v14 offset:{w*8}')
            if w % 8 == 7: A('  s_waitcnt lgkmcnt(0)')
        A('  v_lshlrev_b32 v13, 3, v0')
        def rd(c0):
            for w in range(c0, c0 + CH):
                r = OV + 4 * (w % (2 * CH))
                A(f'  ds_read2_b64 v[{r}:{r+3}], v13 offset0:0 offset1:64')
                A('  v_add_u32 v13, 0x400, v13')
        rd(0)
        A(f'  s_waitcnt lgkmcnt({CH})')
        A(f'  v_mov_b32 v{M}, v{ST}')
        for w in range(1, NW): A(f'  v_max_f32 v{M}, v{M}, v{ST+2*w}')
        A(f'  v_mov_b32 v{LS}, 0'); A(f'  v_mov_b32 v{T}, 0'); A(f'  v_mov_b32 v{U}, 0')
        for w in range(NW):
            A(f'  v_sub_f32 v{ST+2*w}, v{ST+2*w}, v{M}')
            A(f'  v_mul_f32 v{ST+2*w}, s34, v{ST+2*w}')
            A(f'  v_exp_f32 v{ST+2*w}, v{ST+2*w}')
        A('  s_nop 0')
        for w in range(NW): A(f'  v_fmac_f32 v{LS}, v{ST+2*w}, v{ST+2*w+1}')
        A(f'  v_rcp_f32 v{LS}, v{LS}')
        for c0 in range(0, NW, CH):
            if c0 + CH < NW:
                rd(c0 + CH); A(f'  s_waitcnt lgkmcnt({CH})')
            else:
                A('  s_waitcnt lgkmcnt(0)')
            for w in range(c0, c0 + CH):
                r = OV + 4 * (w % (2 * CH))
                A(f'  v_add_f32 v{r}, v{r}, v{r+2}')
                A(f'  v_add_f32 v{r+1}, v{r+1}, v{r+3}')
                A(f'  v_fmac_f32 v{T}, v{ST+2*w}, v{r}')
                A(f'  v_fmac_f32 v{U}, v{ST+2*w}, v{r+1}')
        A(f'  v_mul_f32 v{T}, v{T}, v{LS}')
        A(f'  v_mul_f32 v{U}, v{U}, v{LS}')
        A(f'  v_cvt_pk_bf16_f32 v{T}, v{T}, v{U}')
        A('  v_lshlrev_b32 v15, 2, v0')
        A(f'  buffer_store_dword v{T}, v15, s[28:31], s39 offen')
    A('L_end:')
    A('  s_endpgm')
    L.extend(rare)
    A('.section .rodata,"a"'); A('.p2align 6')
    A(f'.amdhsa_kernel {name}')
    A(f'  .amdhsa_next_free_vgpr {nvgpr}')
    A('  .amdhsa_next_free_sgpr 64')
    A(f'  .amdhsa_accum_offset {(nvgpr+3)//4*4}')
    A('  .amdhsa_group_segment_fixed_size 0')
    A('  .amdhsa_kernarg_size 48')
    A('  .amdhsa_user_sgpr_count 2')
    A('  .amdhsa_user_sgpr_kernarg_segment_ptr 1')
    A('  .amdhsa_system_sgpr_workgroup_id_x 1')
    A('.end_amdhsa_kernel')
    return '\n'.join(L) + '\n'
```

```python
from gen import gen
from gen5 import gen5
out='cdna_kernels/'
open(out+'d_w20.s','w').write(gen5(W=20,NB=0))
open(out+'d_w24.s','w').write(gen5(W=24,NB=0))
open(out+'d_w28.s','w').write(gen5(W=28,NB=0))
open(out+'d_4w6.s','w').write(gen5(NW=4,R=8,W=6,WB=6,NB=0))
open(out+'d_2w11.s','w').write(gen5(NW=2,R=16,W=11,WB=11,NB=0))
open(out+'d_w22.s','w').write(gen5(W=22,NB=0))
```

```python
import math, struct, sys
from gen import HEADER, f32bits

def gen11(R=32, W=20, W2=None, pol='nt', lds=90000, stamps=0, name='standalone__mha_softmax__sampling_kernel',
         null=False, dbg=False, touch=False, hmap=0, denorm=True, early=False, gb=0, dlog=15, ns=1):
    if W2 is None: W2 = W
    assert R % 4 == 0 and W <= R - early and W2 <= R - early and W2 >= W and 2048 % R == 0
    GI = R // 4
    NIT = 2048 // R
    L = []; A = L.append
    c = (128 ** -0.5) * math.log2(math.e)
    A(HEADER.rstrip())
    A(f"; @launch grid=(256,1,1) block=(64,1,1) lds={lds}")
    A('.amdgcn_target "amdgcn-amd-amdhsa--gfx950"')
    A('.text'); A(f'.globl {name}'); A('.p2align 8'); A(f'.type {name},@function'); A(f'{name}:')
    VOFF, Q, MSK, MX, MC, LS, LA = 1, 2, 6, 10, 11, 12, 13
    ACL, ACH = 16, 20
    S0, Y, Z, S, P, PP, T, U = 24, 28, 29, 30, 31, 32, 33, 34
    SR = (14, 15)
    PA, PB = 36, 40
    assert GI == 8
    so = lambda u: f's{64 + (u % 8)}'
    mb = dlog - 10 - gb
    def blk(p):
        low = p & ((1 << gb) - 1); sub = (p >> gb) & ((1 << ns) - 1); mid = (p >> (gb + ns)) & ((1 << mb) - 1); hi = p >> (gb + ns + mb)
        return (((hi << ns | sub) << mb | mid) << gb) | low
    perm_bytes = lambda u: blk(4 * u) * 1024
    inner = [blk(n) * 1024 for n in range(4)]
    for u in range(1024):
        for n in range(4): assert blk(4 * u + n) * 1024 == perm_bytes(u) + inner[n]
    big = sorted({x & ~4095 for x in inner})
    VB = {x: (VOFF if x == 0 else 44 + i) for i, x in enumerate(big)}
    def calc(u_rel):
        d = so(u_rel[1])
        o = [f'  s_add_u32 s61, s33, {u_rel[0]}', '  s_lshl_b32 s61, s61, 2']
        lo_bits = gb + ns
        o += [f'  s_bfe_u32 s62, s61, {(mb << 16) | lo_bits}', f'  s_lshl_b32 s62, s62, {gb + 10}']
        o += [f'  s_lshr_b32 s63, s61, {lo_bits + mb}', f'  s_lshl_b32 s63, s63, {lo_bits + mb + 10}', '  s_or_b32 s62, s62, s63']
        if lo_bits > 2:
            o += [f'  s_bfe_u32 s63, s61, {(ns << 16) | gb}', f'  s_lshl_b32 s63, s63, {gb + mb + 10}', '  s_or_b32 s62, s62, s63']
        if gb > 2:
            o += [f'  s_and_b32 s63, s61, {(1 << gb) - 1}', '  s_lshl_b32 s63, s63, 10', '  s_or_b32 s62, s62, s63']
        o += [f'  s_mov_b32 {d}, s62']
        return o
    far = (3 + W2) // 4
    assert far <= 7
    BUF = 48
    slot = lambda p: BUF + 4 * (p % R)
    nvgpr = BUF + 4 * R
    A('  s_cmp_ge_u32 s2, 256')
    A('  s_cbranch_scc1 L_end')
    A('  s_load_dwordx8 s[4:11], s[0:1], 0')
    if stamps:
        A('  s_memrealtime s[44:45]')
        A('  s_load_dwordx2 s[14:15], s[0:1], 40')
    if hmap == 1:
        A('  s_and_b32 s36, s2, 7'); A('  s_lshl_b32 s36, s36, 5'); A('  s_lshr_b32 s3, s2, 3'); A('  s_mov_b32 s51, s2'); A('  s_add_u32 s2, s36, s3')
    A(f'  v_lshlrev_b32 v{VOFF}, 4, v0')
    for x, r in VB.items():
        if x: A(f'  v_add_u32 v{r}, {x}, v{VOFF}')
    A('  s_lshl_b32 s37, s2, 21')
    A('  s_lshr_b32 s38, s2, 11')
    A('  s_mov_b32 s32, 0')
    A('  s_mov_b32 s33, 0')
    for u in range(far): A(f'  s_mov_b32 {so(u)}, {perm_bytes(u)}')
    A('  s_lshl_b32 s39, s2, 8')
    A(f'  v_and_b32 v{T}, 15, v0')
    A(f'  v_lshlrev_b32 v{T}, 4, v{T}')
    A(f"  s_mov_b32 s18, {'0' if null else '0x200000'}"); A('  s_mov_b32 s19, 0x00020000')
    A('  s_mov_b32 s26, 0x10000'); A('  s_mov_b32 s27, 0x00020000')
    A('  s_waitcnt lgkmcnt(0)')
    A('  s_add_u32 s16, s6, s37'); A('  s_addc_u32 s17, s7, s38')
    A('  s_mov_b32 s24, s4'); A('  s_mov_b32 s25, s5')
    def ld(p, voff, soff):
        r = slot(p)
        x = inner[p & 3]
        return f'  buffer_load_dwordx4 v[{r}:{r+3}], v{VB[x & ~4095]}, s[16:19], {soff} offen offset:{x & 4095} {pol}'.rstrip()
    for p in range(W):
        A(ld(p, VOFF, so(p // 4)))
        if p == 0: A(f'  buffer_load_dwordx4 v[{Q}:{Q+3}], v{T}, s[24:27], s39 offen')
    A('  s_add_u32 s20, s8, s37'); A('  s_addc_u32 s21, s9, s38')
    A('  s_sub_u32 s20, s20, 0x200000'); A('  s_subb_u32 s21, s21, 0')
    A(f"  s_mov_b32 s22, {'0' if null else '0x400000'}")
    A('  s_mov_b32 s28, s10'); A('  s_mov_b32 s29, s11'); A('  s_mov_b32 s30, 0x10000'); A('  s_mov_b32 s31, 0x00020000')
    A(f'  s_mov_b32 s34, 0x{f32bits(c):08x}')
    A(f'  v_and_b32 v{Y}, 1, v0')
    A(f'  v_cmp_eq_u32 vcc, 1, v{Y}')
    A(f'  v_mov_b32 v{Y}, 0xffff')
    A(f'  v_mov_b32 v{Z}, 0xffff0000')
    A(f'  v_cndmask_b32 v{T}, v{Y}, v{Z}, vcc')
    A(f'  v_bfe_u32 v{U}, v0, 1, 2')
    for r in range(4):
        A(f'  v_cmp_eq_u32 vcc, {r}, v{U}'); A('  s_nop 1'); A(f'  v_cndmask_b32 v{MSK+r}, 0, v{T}, vcc')
    A(f'  v_mov_b32 v{MX}, 0xff800000'); A(f'  v_mov_b32 v{LS}, 0')
    for r in range(8): A(f'  v_mov_b32 v{ACL+r}, 0')
    A(f'  v_and_b32 v{LA}, 0x3c, v0')
    A(f'  s_mov_b32 s35, {NIT}')
    A(f'  s_waitcnt vmcnt({W - 1})')
    cut = R - W
    A('L_k:')
    for t in range(GI):
        p0 = 4 * t
        L.extend(calc((t + far, t + far)))
        for n in range(4):
            A(f'  s_waitcnt vmcnt({W - 1})')
            def dots():
                for r in range(4):
                    src2 = '0' if r == 0 else f'v{S0+n}'
                    A(f'  v_dot2_f32_bf16 v{S0+n}, v{slot(p0+n)+r}, v{Q+r}, {src2}')
            if not early: dots()
            if p0 + n == cut:
                A('  s_cmp_eq_u32 s35, 1')
                A('  s_cselect_b32 s16, s20, s16')
                A('  s_cselect_b32 s17, s21, s17')
                A('  s_cselect_b32 s18, s22, s18')
            A(ld(p0 + n + W, VOFF, so((p0 + n + W) // 4)))
            if early: dots()
        A(f'  v_add_f32_dpp v{Y}, v{S0+0}, v{S0+0} row_mirror row_mask:0xf bank_mask:0x3')
        A(f'  v_add_f32_dpp v{Z}, v{S0+1}, v{S0+1} row_mirror row_mask:0xf bank_mask:0x3')
        A(f'  v_add_f32_dpp v{Y}, v{S0+2}, v{S0+2} row_mirror row_mask:0xf bank_mask:0xc')
        A(f'  v_add_f32_dpp v{Z}, v{S0+3}, v{S0+3} row_mirror row_mask:0xf bank_mask:0xc')
        A('  s_nop 0')
        A(f'  v_add_f32_dpp v{S}, v{Y}, v{Y} row_half_mirror row_mask:0xf bank_mask:0x5')
        A(f'  v_add_f32_dpp v{S}, v{Z}, v{Z} row_half_mirror row_mask:0xf bank_mask:0xa')
        A('  s_nop 1')
        A(f'  v_add_f32_dpp v{S}, v{S}, v{S} quad_perm:[2,3,0,1] row_mask:0xf bank_mask:0xf')
        A('  s_nop 1')
        A(f'  v_add_f32_dpp v{S}, v{S}, v{S} quad_perm:[1,0,3,2] row_mask:0xf bank_mask:0xf')
        A(f'  ds_write_b32 v{LA}, v{S} offset:{t*64}')
        A(f'  v_max_f32 v{MX}, v{MX}, v{S}')
    A(f'  v_add_u32 v{LA}, {GI*64}, v{LA}')
    A(f'  s_add_u32 s33, s33, {GI}')
    A('  s_sub_u32 s35, s35, 1')
    A('  s_cmp_lg_u32 s35, 0')
    A('  s_cbranch_scc1 L_k')
    for i in range(W, W2): A(ld(i, VOFF, so(i // 4)))
    A(f'  v_and_b32 v{LA}, 0x3c, v0')
    A(f'  v_max_f32_dpp v{T}, v{MX}, v{MX} row_half_mirror row_mask:0xf bank_mask:0xf')
    A('  s_waitcnt lgkmcnt(0)')
    A(f'  ds_read_b32 v{SR[0]}, v{LA}')
    A(f'  v_max_f32_dpp v{T}, v{T}, v{T} row_mirror row_mask:0xf bank_mask:0xf')
    A('  s_nop 1')
    for i in range(4): A(f'  v_readlane_b32 s{40+i}, v{T}, {16*i}')
    A(f'  s_mov_b32 s35, {NIT}')
    A('  s_nop 0')
    A(f'  v_mov_b32 v{T}, s40')
    for i in range(1, 4): A(f'  v_max_f32 v{T}, s{40+i}, v{T}')
    A(f'  v_mul_f32 v{MC}, s34, v{T}')
    A('L_v:')
    for t in range(GI):
        p0 = 4 * t
        cur, nxt = SR[t % 2], SR[(t + 1) % 2]
        L.extend(calc((t + far, t + far)))
        A('  s_waitcnt lgkmcnt(0)')
        A(f'  v_fma_f32 v{P}, v{cur}, s34, -v{MC}')
        A(f'  ds_read_b32 v{nxt}, v{LA} offset:{(t+1)*64}')
        A(f'  v_exp_f32 v{P}, v{P}')
        A('  s_nop 0')
        A(f'  v_cvt_pk_bf16_f32 v{PP}, v{P}, v{P}')
        A(f'  v_add_f32 v{LS}, v{LS}, v{P}')
        A(f'  v_and_b32 v{PA+0}, v{PP}, v{MSK+0}')
        A(f'  v_and_b32 v{PA+1}, v{PP}, v{MSK+1}')
        A(f'  v_and_b32 v{PB+2}, v{PP}, v{MSK+2}')
        A(f'  v_and_b32 v{PB+3}, v{PP}, v{MSK+3}')
        hm = 'row_half_mirror row_mask:0xf bank_mask:0xf'
        A(f'  v_and_b32_dpp v{PA+2}, v{PP}, v{MSK+2} {hm}')
        A(f'  v_and_b32_dpp v{PA+3}, v{PP}, v{MSK+3} {hm}')
        A(f'  v_and_b32_dpp v{PB+0}, v{PP}, v{MSK+0} {hm}')
        A(f'  v_and_b32_dpp v{PB+1}, v{PP}, v{MSK+1} {hm}')
        for n, (acc, p) in enumerate(((ACL, PA), (ACL, PB), (ACH, PA), (ACH, PB))):
            r = slot(p0 + n)
            A(f'  s_waitcnt vmcnt({W2 - 1})')
            if early: A(ld(p0 + n + W2, VOFF, so((p0 + n + W2) // 4)))
            A(f'  v_mfma_f32_16x16x32_bf16 v[{acc}:{acc+3}], v[{p}:{p+3}], v[{r}:{r+3}], v[{acc}:{acc+3}]')
            if not early: A(ld(p0 + n + W2, VOFF, so((p0 + n + W2) // 4)))
    A(f'  v_add_u32 v{LA}, {GI*64}, v{LA}')
    A(f'  s_add_u32 s33, s33, {GI}')
    A('  s_sub_u32 s35, s35, 1')
    A('  s_cmp_lg_u32 s35, 0')
    A('  s_cbranch_scc1 L_v')
    A('  s_nop 7')
    A(f'  v_add_f32_dpp v{T}, v{LS}, v{LS} row_half_mirror row_mask:0xf bank_mask:0xf')
    A('  s_nop 1')
    A(f'  v_add_f32_dpp v{T}, v{T}, v{T} row_mirror row_mask:0xf bank_mask:0xf')
    A('  s_nop 1')
    for i in range(4): A(f'  v_readlane_b32 s{40+i}, v{T}, {16*i}')
    A('  s_nop 1')
    A(f'  v_mov_b32 v{MC}, s40')
    for i in range(1, 4): A(f'  v_add_f32 v{MC}, s{40+i}, v{MC}')
    A(f'  v_rcp_f32 v{MC}, v{MC}')
    for r in range(4): A(f'  v_permlane32_swap_b32 v{ACH+r}, v{PA+r}')
    A(f'  v_and_b32 v{Y}, 15, v0')
    A(f'  v_lshlrev_b32 v{Y}, 4, v{Y}')
    A(f'  v_bfe_u32 v{Z}, v0, 4, 1')
    A(f'  v_lshl_add_u32 v{Y}, v{Z}, 3, v{Y}')
    A(f'  v_lshrrev_b32 v{Z}, 5, v0')
    A(f'  v_lshl_add_u32 v{Y}, v{Z}, 30, v{Y}')
    for r in range(4): A(f'  v_add_f32 v{PA+r}, v{PA+r}, v{ACL+r}')
    for r in range(4): A(f'  v_mul_f32 v{PA+r}, v{PA+r}, v{MC}')
    A(f'  v_cvt_pk_bf16_f32 v{PB}, v{PA}, v{PA+1}')
    A(f'  v_cvt_pk_bf16_f32 v{PB+1}, v{PA+2}, v{PA+3}')
    A(f'  buffer_store_dwordx2 v[{PB}:{PB+1}], v{Y}, s[28:31], s39 offen')
    if stamps:
        A('  s_memrealtime s[46:47]')
        A('  s_getreg_b32 s48, hwreg(HW_REG_XCC_ID)')
        A('  s_getreg_b32 s49, hwreg(HW_REG_HW_ID)')
        A('  s_mov_b32 s52, s14'); A('  s_mov_b32 s53, s15'); A('  s_mov_b32 s54, 0x400000'); A('  s_mov_b32 s55, 0x00020000')
        A('  s_lshl_b32 s50, s2, 4')
        A('  s_waitcnt lgkmcnt(0)')
        A('  v_mov_b32 v24, s44'); A('  v_mov_b32 v25, s46'); A('  v_mov_b32 v26, s48'); A('  v_mov_b32 v27, s49'); A('  v_mov_b32 v14, s50')
        A('  buffer_store_dwordx4 v[24:27], v14, s[52:55], 0 offen')
    A('L_end:')
    A('  s_endpgm')
    A('.section .rodata,"a"'); A('.p2align 6')
    A(f'.amdhsa_kernel {name}')
    A(f'  .amdhsa_next_free_vgpr {nvgpr}')
    A('  .amdhsa_next_free_sgpr 80')
    A(f'  .amdhsa_accum_offset {(nvgpr+3)//4*4}')
    A('  .amdhsa_group_segment_fixed_size 0')
    A('  .amdhsa_kernarg_size 48')
    A('  .amdhsa_user_sgpr_count 2')
    A('  .amdhsa_user_sgpr_kernarg_segment_ptr 1')
    A('  .amdhsa_system_sgpr_workgroup_id_x 1')
    if denorm: A('  .amdhsa_float_denorm_mode_32 3')
    A('.end_amdhsa_kernel')
    return '\n'.join(L) + '\n'
```
